```python
import torch

def _softmax(x, axis=-1):
    return torch.softmax(x, dim=axis)
def _gelu(x):
    return torch.nn.functional.gelu(x, approximate="tanh")
def _silu(x):
    return torch.nn.functional.silu(x)
def _sigmoid(x):
    return torch.sigmoid(x)
def _layernorm(x, axis=-1, eps=1e-5):
    m = x.mean(dim=axis, keepdim=True)
    v = x.var(dim=axis, keepdim=True, unbiased=False)
    return (x - m) / torch.sqrt(v + eps)
def _scatter_add(tgt, idx, src, axis=0):
    return tgt.clone().index_add_(axis, idx, src)
def _segment_sum(src, seg, n):
    out = torch.zeros((n,) + src.shape[1:], dtype=src.dtype)
    return out.index_add_(0, seg, src)
def _pad(x, pw):
    flat = tuple(v for pair in reversed(pw) for v in pair)
    return torch.nn.functional.pad(x, flat)

kernel_name = 'concat_heads__gqa_block_cached__compressed_kv_cla__decode'

def setup_inputs():

    _w = (lambda a: (lambda t: t.to(torch.bfloat16) if t.is_floating_point() else t)(torch.as_tensor(a)))
    def _A_setup():
        B, Sq, D = 2, 1, 512
        Hq, Hkv, Sk, Dh = 32, 8, 8192, 128
        assert Hq % Hkv == 0, (Hq, Hkv)
        return {
            "x": _w((lambda *s: torch.randn(*s, dtype=torch.bfloat16) * 1.6)(B, Sq, D)),
            "k_cache": _w((lambda *s: torch.randn(*s, dtype=torch.bfloat16) * 1.6)(B, Hkv, Sk, Dh)),
            "v_cache": _w((lambda *s: torch.randn(*s, dtype=torch.bfloat16) * 0.05)(B, Hkv, Sk, Dh)),
            "wq": _w((lambda *s: torch.randn(*s, dtype=torch.bfloat16) * 1.6)(D, Hq * Dh) * (D ** -0.5)),
            "wo": _w((lambda *s: torch.randn(*s, dtype=torch.bfloat16) * 0.05)(Hq * Dh, D) * ((Hq * Dh) ** -0.5)),
        }
    _A_in = _A_setup()

    def _B_setup():
        B, H, Sq, Sk, D, M = 2, 32, 1, 8192, 128, 512
        Dc = 4 * D
        return {
            "x": _w((lambda *s: torch.randn(*s, dtype=torch.bfloat16) * 3.2)(B, Sq, M)),
            "c_kv": _w((lambda *s: torch.randn(*s, dtype=torch.bfloat16) * 0.1)(B, Sk, Dc)),
            "w_q": _w((lambda *s: torch.randn(*s, dtype=torch.bfloat16) * 6.4)(M, H, D) * (M ** -0.5)),
            "w_uk": _w((lambda *s: torch.randn(*s, dtype=torch.bfloat16) * 6.4)(Dc, H, D) * (Dc ** -0.5)),
            "w_uv": _w((lambda *s: torch.randn(*s, dtype=torch.bfloat16) * 0.1)(Dc, H, D) * (Dc ** -0.5)),
            "w_o": _w((lambda *s: torch.randn(*s, dtype=torch.bfloat16) * 0.1)(H, D, M) * ((H * D) ** -0.5)),
        }
    _B_in = _B_setup()

    return {
        "A_x": _A_in["x"],
        "A_k_cache": _A_in["k_cache"],
        "A_v_cache": _A_in["v_cache"],
        "A_wq": _A_in["wq"],
        "A_wo": _A_in["wo"],
        "B_x": _B_in["x"],
        "B_c_kv": _B_in["c_kv"],
        "B_w_q": _B_in["w_q"],
        "B_w_uk": _B_in["w_uk"],
        "B_w_uv": _B_in["w_uv"],
        "B_w_o": _B_in["w_o"],
    }

def reference(A_x, A_k_cache, A_v_cache, A_wq, A_wo, B_x, B_c_kv, B_w_q, B_w_uk, B_w_uv, B_w_o):
    def _A_ref(x, k_cache, v_cache, wq, wo):
        B, Sq, D = x.shape
        Hq, Dh = 32, 128
        Hkv = k_cache.shape[1]
        rep = Hq // Hkv
        q = (lambda x, *d: x.permute(*d))((x @ wq).reshape(B, Sq, Hq, Dh), 0, 2, 1, 3)
        k = (lambda x, n, axis: torch.repeat_interleave(x, n, dim=axis))(k_cache, rep, axis=1)
        v = (lambda x, n, axis: torch.repeat_interleave(x, n, dim=axis))(v_cache, rep, axis=1)
        scores = torch.einsum("bhqd,bhkd->bhqk", q, k) * (Dh ** -0.5)
        p = _softmax(scores, axis=-1)
        o = torch.einsum("bhqk,bhkd->bhqd", p, v)
        return (lambda x, *d: x.permute(*d))(o, 0, 2, 1, 3).reshape(B, Sq, Hq * Dh) @ wo

    def _B_ref(x, c_kv, w_q, w_uk, w_uv, w_o):
        B, Sq, M = x.shape[0], x.shape[1], x.shape[2]
        Sk = c_kv.shape[1]
        H, D = w_q.shape[1], w_q.shape[2]
        q = torch.einsum("bqm,mhd->bhqd", x, w_q)
        k = torch.einsum("bkc,chd->bhkd", c_kv, w_uk)
        v = torch.einsum("bkc,chd->bhkd", c_kv, w_uv)
        scores = torch.einsum("bhqd,bhkd->bhqk", q, k) * (D ** -0.5)
        off = Sk - Sq
        qi = torch.arange(Sq)[:, None]
        kj = torch.arange(Sk)[None, :]
        cmask = kj <= (qi + off)
        scores = torch.where(cmask[None, None], scores, -1e9)
        p = _softmax(scores, axis=-1)
        ctx = torch.einsum("bhqk,bhkd->bhqd", p, v)
        return torch.einsum("bhqd,hdm->bqm", ctx, w_o)

    a = _A_ref(A_x, A_k_cache, A_v_cache, A_wq, A_wo)
    b = _B_ref(B_x, B_c_kv, B_w_q, B_w_uk, B_w_uv, B_w_o)
    return torch.concatenate([a, b], axis=-1)
```

```python
import re

TRANS = ('v_exp_f32', 'v_log_f32', 'v_rcp_f32', 'v_rsq_f32', 'v_sqrt_f32', 'v_sin_f32', 'v_cos_f32')

def regs_of(tok):
    tok = tok.strip()
    tok = tok.lstrip('-')
    if tok.startswith('abs(') and tok.endswith(')'):
        tok = tok[4:-1]
    m = re.fullmatch(r'([vs])(\d+)', tok)
    if m:
        return {(m.group(1), int(m.group(2)))}
    m = re.fullmatch(r'([vs])\[(\d+):(\d+)\]', tok)
    if m:
        return {(m.group(1), i) for i in range(int(m.group(2)), int(m.group(3)) + 1)}
    if tok in ('vcc', 'vcc_lo', 'vcc_hi'):
        return {('vcc', 0)}
    if tok in ('exec', 'exec_lo', 'exec_hi'):
        return {('exec', 0)}
    return set()

class Ins:
    def __init__(self, text):
        self.text = text
        t = text.split(';')[0].strip()
        parts = t.split(None, 1)
        self.op = parts[0]
        rest = parts[1] if len(parts) > 1 else ''
        ops = [x.strip() for x in rest.split(',')] if rest else []
        if ops:
            last = ops[-1].split()
            ops[-1] = last[0] if last else ''
            self.mods = last[1:]
        else:
            self.mods = []
        self.ops = ops
        op = self.op
        self.is_mfma = op.startswith('v_mfma')
        self.is_valu = op.startswith('v_') and not self.is_mfma
        self.is_vmem = op.startswith('buffer_') or op.startswith('global_')
        self.is_ds = op.startswith('ds_')
        self.is_salu = op.startswith('s_')
        self.is_dpp = op.endswith('_dpp')
        self.is_trans = op.replace('_e32', '').replace('_e64', '') in TRANS
        self.is_perml = op.startswith('v_permlane')
        self.is_rdlane = op.startswith('v_readlane') or op.startswith('v_readfirstlane')
        self.w = set(); self.r = set()
        self.srcC = set(); self.srcAB = set()
        R = [regs_of(o) for o in ops]
        if self.is_mfma:
            self.w = R[0]; self.srcAB = R[1] | R[2]; self.srcC = R[3]; self.r = self.srcAB | self.srcC
            self.passes = 4 if '16x16x32' in op else 8
        elif self.is_valu:
            if self.is_perml:
                self.w = R[0] | R[1]; self.r = R[0] | R[1]
            elif op.startswith('v_cmp'):
                self.w = R[0]; self.r = set().union(*R[1:])
            else:
                self.w = R[0]; self.r = set().union(*R[1:]) if len(R) > 1 else set()
                if op.startswith('v_fmac') or op.startswith('v_dot2c') or (self.is_dpp):
                    self.r |= R[0]
                if op.startswith('v_add_co') or op.startswith('v_addc_co'):
                    self.w |= R[1]
        elif self.is_vmem:
            if 'load' in op:
                self.w = R[0]; self.r = set().union(*R[1:])
            else:
                self.r = set().union(*R)
                self.store_data = R[0] if op.startswith('buffer_') else R[1]
        elif self.is_ds:
            if op.startswith('ds_read') or op.startswith('ds_bpermute') or op.startswith('ds_swizzle'):
                self.w = R[0]; self.r = set().union(*R[1:])
            else:
                self.r = set().union(*R)
        elif self.is_salu:
            if op.startswith('s_cmp') or op.startswith('s_cbranch') or op in ('s_waitcnt', 's_nop', 's_barrier', 's_sleep', 's_branch', 's_endpgm', 's_setprio'):
                self.r = set().union(*R) if R else set()
            else:
                self.w = R[0] if R else set(); self.r = set().union(*R[1:]) if len(R) > 1 else set()
        self.states = 1
        if op == 's_nop':
            self.states = int(ops[0], 0) + 1

def need(p, c):
    n = 0
    vw = {x for x in p.w if x[0] == 'v'}
    sw = {x for x in p.w if x[0] in ('s', 'vcc')}
    if p.is_valu:
        if c.is_mfma and vw & c.r: n = max(n, 2)
        if c.is_valu and c.is_dpp and vw & c.r: n = max(n, 2)
        if c.is_perml and vw & c.r: n = max(n, 2)
        if c.is_rdlane and vw & c.r: n = max(n, 1)
        if p.is_trans and (c.is_valu or c.is_mfma) and not c.is_trans and vw & c.r: n = max(n, 1)
        if sw:
            if c.is_valu and sw & c.r: n = max(n, 4 if c.is_rdlane else 2)
            if c.is_vmem and sw & c.r: n = max(n, 5)
            if c.is_salu and sw & c.r: n = max(n, 1)
        if ('exec', 0) in p.w: n = max(n, 5)
        if 'sdwa' in p.op and c.is_valu and vw & (c.r | c.w): n = max(n, 1)
    if p.is_mfma:
        big = {4: 8, 8: 12}[p.passes]; ovl = {4: 6, 8: 10}[p.passes]; war = {4: 3, 8: 7}[p.passes]
        if c.is_mfma:
            if p.w & c.srcAB: n = max(n, big)
            if p.w & c.srcC and not (p.w == c.srcC and p.passes == c.passes): n = max(n, ovl)
            if p.w & c.w and not (p.w == c.srcC and p.passes == c.passes): n = max(n, big)
        elif c.is_valu or c.is_vmem or c.is_ds:
            if p.w & (c.r | c.w): n = max(n, big)
            if c.is_valu and p.srcC & c.w: n = max(n, war)
    if p.is_vmem and hasattr(p, 'store_data') and len(p.store_data) >= 3:
        if p.store_data & c.w: n = max(n, 2)
    if p.is_ds and not p.w and c.is_valu and p.r & c.w and ('b128' in p.op): n = max(n, 1)
    return n

class Asm:
    def __init__(self):
        self.lines = []
        self.hist = []
        self.nlabel = 0
    def raw(self, s):
        self.lines.append(s)
    def label(self, name):
        self.lines.append(name + ':')
    def newlabel(self, base='L'):
        self.nlabel += 1
        return f'{base}_{self.nlabel}'
    def fence(self):
        self.hist = []
    def __call__(self, text):
        for t in text.split('\n'):
            t = t.strip()
            if not t: continue
            if t.startswith(';'):
                self.lines.append('    ' + t); continue
            ins = Ins(t)
            dist = 0; req = 0
            for p in reversed(self.hist):
                k = need(p, ins) - dist
                if k > req: req = k
                dist += p.states
                if dist >= 20: break
            while req > 0:
                k = min(req, 16)
                nop = Ins(f's_nop {k-1}')
                self.lines.append(f'    s_nop {k-1}')
                self.hist.append(nop)
                req -= k
            self.lines.append('    ' + t)
            self.hist.append(ins)
            if len(self.hist) > 40: self.hist = self.hist[-40:]
    def text(self):
        return '\n'.join(self.lines) + '\n'

def vr(b, n=1):
    return f'v{b}' if n == 1 else f'v[{b}:{b+n-1}]'
def sr(b, n=1):
    return f's{b}' if n == 1 else f's[{b}:{b+n-1}]'
```

```python
import struct, math, sys
from asmlib import Asm, vr, sr

KN = 'concat_heads__gqa_block_cached__compressed_kv_cla__decode_kernel'
HEADER = open('concat_heads__gqa_block_cached__compressed_kv_cla__decode.s.ref').read().split('; Override launch')[0]

def f32bits(x): return struct.unpack('<I', struct.pack('<f', x))[0]

WS_EPOCH = 0x0
WS_F1 = 0x1000
WS_F2 = 0x1400
WS_F3 = 0x1500
WS_LB = 0x2000
WS_QP = 0x10000
WS_QABS = 0x50000
WS_AP = 0x60000
WS_YA = 0xE0000
WS_YB = 0x120000
WS_BP = 0x200000
WS_STAMP = 0x400000
WS_SIZE = 0x480000
LDS_TOTAL = 163840
L_QA = 131072
L_MISC = 161792
L_FLAG = L_MISC
L_MX = L_MISC + 1024

sWAVE, sTAG, sT0, sT1, sT2 = 3, 4, 5, 6, 7
sSELLO, sSELHI, sSC, sSPIN = 8, 9, 10, 11
sM1, sM2 = 12, 14
pAX, pK, pV, pWQ, pWO, pBX, pCKV, pBWQ, pWUK, pWUV, pBWO, pOUT, pDBG, pWS = [16 + 2 * i for i in range(14)]
rWS, rA, rB, rC, rD, rE = 44, 48, 52, 56, 60, 64
sH, sKQ, sMAT, sIDX = 68, 69, 70, 71
sU0, sU1, sU2, sU3, sU4, sU5 = 72, 73, 74, 75, 76, 77
sEX = 78
sST = 84
sSTAMPS = 86
NSTAMP = 12
vLANE, vG, vI = 0, 1, 2
SPIN_MAX = 20000

def gen(stamp=False):
    a = Asm()
    def srd(r, p, size):
        a(f's_mov_b32 s{r}, s{p}\n s_and_b32 s{r+1}, s{p+1}, 0xffff\n s_mov_b32 s{r+2}, {size}\n s_mov_b32 s{r+3}, 0x00020000')
    def st(slot):
        if stamp:
            a(f's_memrealtime s[{sST}:{sST+1}]\n s_waitcnt lgkmcnt(0)\n s_mov_b32 s{sSTAMPS+slot}, s{sST}')
    def finish():
        if stamp:
            st(NSTAMP - 1)
            a(f's_branch L_stampout')
        else:
            a('s_endpgm')
        a.fence()
    def poll_flags(voff, soff, vtmp):
        L = a.newlabel('L_poll'); D = a.newlabel('L_polld')
        a(f's_mov_b32 s{sSPIN}, {SPIN_MAX}')
        a.label(L)
        a(f'buffer_load_dword v{vtmp}, v{voff}, {sr(rWS,4)}, {soff} offen sc1')
        a('s_waitcnt vmcnt(0)')
        a(f'v_cmp_ne_u32 vcc, s{sTAG}, v{vtmp}')
        a(f's_cbranch_vccz {D}')
        a('s_sleep 4')
        a(f's_sub_u32 s{sSPIN}, s{sSPIN}, 1\n s_cmp_lg_u32 s{sSPIN}, 0\n s_cbranch_scc1 {L}')
        a.label(D)
    def lds_flag_wait(vaddr, vtmp):
        L = a.newlabel('L_lw'); D = a.newlabel('L_lwd')
        a(f's_mov_b32 s{sSPIN}, {SPIN_MAX*8}')
        a.label(L)
        a(f'ds_read_b32 v{vtmp}, v{vaddr}')
        a('s_waitcnt lgkmcnt(0)')
        a(f'v_cmp_eq_u32 vcc, 0, v{vtmp}')
        a(f's_cbranch_vccz {D}')
        a('s_sleep 2')
        a(f's_sub_u32 s{sSPIN}, s{sSPIN}, 1\n s_cmp_lg_u32 s{sSPIN}, 0\n s_cbranch_scc1 {L}')
        a.label(D)
    def transpose8(src, dst, nd=4):
        for w in range(nd):
            for half, sel in ((0, sSELLO), (1, sSELHI)):
                e = 2 * w + half
                for p in range(4):
                    a(f'v_perm_b32 v{dst+4*e+p}, v{src+nd*(2*p+1)+w}, v{src+nd*(2*p)+w}, s{sel}')
    def xg_reduce(v, t, op):
        a(f'v_mov_b32 v{t}, v{v}')
        a(f'v_permlane16_swap_b32 v{v}, v{t}')
        a(f'{op} v{v}, v{v}, v{t}')
        a(f'v_mov_b32 v{t}, v{v}')
        a(f'v_permlane32_swap_b32 v{v}, v{t}')
        a(f'{op} v{v}, v{v}, v{t}')
    def dpp_reduce(regs, rors, op='v_add_f32'):
        for ro in rors:
            for v in regs:
                a(f'{op}_dpp v{v}, v{v}, v{v} row_ror:{ro} row_mask:0xf bank_mask:0xf')
    def select4(acc, dst, t0, t1):
        for e in range(4):
            a(f'v_cndmask_b32 v{t0}, v{acc+4*e}, v{acc+4*e+1}, {sr(sM1,2)}')
            a(f'v_cndmask_b32 v{t1}, v{acc+4*(4+e)}, v{acc+4*(4+e)+1}, {sr(sM1,2)}')
            a(f'v_cndmask_b32 v{dst+e}, v{t0}, v{t1}, {sr(sM2,2)}')

    a.raw(HEADER.rstrip('\n'))
    a.raw(f'; @launch grid=(256,1,1) block=(512,1,1) lds={LDS_TOTAL}')
    a.raw('.amdgcn_target "amdgcn-amd-amdhsa--gfx950"\n.text')
    a.raw(f'.globl {KN}\n.p2align 8\n.type {KN},@function')
    a.label(KN)
    a('s_cmp_ge_u32 s2, 256\n s_cbranch_scc1 L_end')
    a('s_load_dwordx16 s[16:31], s[0:1], 0\n s_load_dwordx8 s[32:39], s[0:1], 64\n s_load_dwordx4 s[40:43], s[0:1], 96')
    if stamp:
        for i in range(NSTAMP): a(f's_mov_b32 s{sSTAMPS+i}, 0')
    a(f'v_lshrrev_b32 v1, 6, v0\n v_readfirstlane_b32 s{sWAVE}, v1\n v_and_b32 v0, 63, v0')
    a(f'v_lshrrev_b32 v{vG}, 4, v0\n v_and_b32 v{vI}, 15, v0')
    a(f's_mov_b32 s{sSELLO}, 0x05040100\n s_mov_b32 s{sSELHI}, 0x07060302')
    a(f's_mov_b32 s{sSC}, {f32bits(math.log2(math.e) / math.sqrt(128.0)):#x}')
    a(f's_mov_b32 s{sM1}, 0xffff0000\n s_mov_b32 s{sM1+1}, 0xffff0000\n s_mov_b32 s{sM2}, 0\n s_mov_b32 s{sM2+1}, -1')
    a(f's_and_b32 s{sIDX}, s2, 63')
    a('s_waitcnt lgkmcnt(0)')
    st(0)
    srd(rWS, pWS, WS_SIZE)
    a(f's_cmp_lg_u32 s{sWAVE}, 0\n s_cbranch_scc1 L_notw0')

    X, ACC, W, T = 16, 32, 64, 192
    a(f's_cmp_lt_u32 s2, 128')
    a(f's_cselect_b32 s{rA}, s{pBWQ}, s{pWQ}\n s_cselect_b32 s{rA+1}, s{pBWQ+1}, s{pWQ+1}')
    a(f's_cselect_b32 s{rB}, s{pBX}, s{pAX}\n s_cselect_b32 s{rB+1}, s{pBX+1}, s{pAX+1}')
    a(f's_cselect_b32 s{sMAT}, 1, 0')
    a(f's_and_b32 s{rA+1}, s{rA+1}, 0xffff\n s_mov_b32 s{rA+2}, {4<<20}\n s_mov_b32 s{rA+3}, 0x00020000')
    a(f's_and_b32 s{rB+1}, s{rB+1}, 0xffff\n s_mov_b32 s{rB+2}, 2048\n s_mov_b32 s{rB+3}, 0x00020000')
    a(f's_lshr_b32 s{sT0}, s2, 2\n s_and_b32 s{sT1}, s2, 3')
    a(f's_lshr_b32 s{sU0}, s{sIDX}, 1\n s_and_b32 s{sU1}, s2, 1')
    a(f's_cmp_lt_u32 s2, 192\n s_cselect_b32 s{sU2}, 2, 0\n s_add_u32 s{sU1}, s{sU1}, s{sU2}')
    a(f's_cmp_lt_u32 s2, 128\n s_cselect_b32 s{sH}, s{sT0}, s{sU0}\n s_cselect_b32 s{sKQ}, s{sT1}, s{sU1}')
    a(f'v_and_b32 v3, 1, v0\n v_lshlrev_b32 v3, 10, v3\n v_lshl_add_u32 v3, v{vG}, 4, v3')
    a(f's_lshl_b32 s{sT0}, s{sKQ}, 8')
    for ks in range(4):
        a(f'buffer_load_dwordx4 {vr(X+4*ks,4)}, v3, {sr(rB,4)}, s{sT0} offen offset:{ks*64}')
    a(f'v_lshlrev_b32 v4, 16, v{vG}\n v_lshl_add_u32 v4, v{vI}, 4, v4')
    a(f's_lshl_b32 s{sT0}, s{sKQ}, 20\n s_lshl_b32 s{sT1}, s{sH}, 8\n s_add_u32 s{sT0}, s{sT0}, s{sT1}')
    for ks in range(4):
        for j in range(8):
            if ks or j:
                a(f's_add_u32 s{sT0}, s{sT0}, {8192 if j else 25*8192}')
            a(f'buffer_load_dwordx4 {vr(W+32*ks+4*j,4)}, v4, {sr(rA,4)}, s{sT0} offen nt')
    a(f'v_mov_b32 v5, {L_FLAG}\n v_mov_b32 v6, 0\n ds_write_b32 v5, v6\n s_waitcnt lgkmcnt(0)\n s_barrier')
    a(f's_load_dword s{sTAG}, s[{pWS}:{pWS+1}], {WS_EPOCH}')
    for ks in range(4):
        a(f's_waitcnt vmcnt({24-8*ks})')
        transpose8(W + 32 * ks, T)
        for e in range(8):
            c = '0' if ks == 0 else vr(ACC+4*e, 4)
            a(f'v_mfma_f32_16x16x32_bf16 {vr(ACC+4*e,4)}, {vr(X+4*ks,4)}, {vr(T+4*e,4)}, {c}')
    a(f'v_and_b32 v5, 1, v{vG}\n v_lshlrev_b32 v5, 9, v5\n v_lshl_add_u32 v5, v{vI}, 5, v5\n v_lshrrev_b32 v6, 1, v{vG}\n v_lshl_add_u32 v5, v6, 4, v5')
    a(f's_lshl_b32 s{sT0}, s{sMAT}, 5\n s_add_u32 s{sT0}, s{sT0}, s{sH}\n s_lshl_b32 s{sT0}, s{sT0}, 2\n s_add_u32 s{sT0}, s{sT0}, s{sKQ}')
    a(f's_lshl_b32 s{sT1}, s{sT0}, 10\n s_add_u32 s{sT1}, s{sT1}, {WS_QP}')
    select4(ACC, 8, 6, 7)
    a(f'buffer_store_dwordx4 v[8:11], v5, {sr(rWS,4)}, s{sT1} offen sc1')
    a('s_cmp_lt_u32 s2, 192\n s_cbranch_scc1 L_noclear')
    a(f'v_mov_b32 v12, -1\n v_mov_b32 v13, -1\n v_mov_b32 v14, -1\n v_mov_b32 v15, -1\n v_lshlrev_b32 v7, 4, v0')
    a(f's_lshl_b32 s{sT1}, s{sIDX}, 13\n s_add_u32 s{sT1}, s{sT1}, {WS_AP}')
    for k in range(4): a(f'buffer_store_dwordx4 v[12:15], v7, {sr(rWS,4)}, s{sT1} offen offset:{k*1024} sc1')
    a(f's_add_u32 s{sT1}, s{sT1}, 4096')
    a(f'buffer_store_dwordx4 v[12:15], v7, {sr(rWS,4)}, s{sT1} offen sc1')
    for base in (WS_YA, WS_YB):
        a(f's_lshl_b32 s{sT1}, s{sIDX}, 12\n s_add_u32 s{sT1}, s{sT1}, {base}')
        for k in range(4): a(f'buffer_store_dwordx4 v[12:15], v7, {sr(rWS,4)}, s{sT1} offen offset:{k*1024} sc1')
    a.label('L_noclear')
    a(f's_lshl_b32 s{sT0}, s{sT0}, 2\n s_add_u32 s{sT0}, s{sT0}, {WS_F1}')
    a('s_waitcnt lgkmcnt(0)')
    a(f's_mul_i32 s{sTAG}, s{sTAG}, 0x9E3779B1\n s_add_u32 s{sTAG}, s{sTAG}, 0x7F4A7C15')
    a(f'v_mov_b32 v6, s{sTAG}\n v_mov_b32 v7, 0')
    a('s_waitcnt vmcnt(0)')
    a(f's_mov_b64 exec, 1\n buffer_store_dword v6, v7, {sr(rWS,4)}, s{sT0} offen sc1\n s_mov_b64 exec, -1')
    st(1)
    a('s_cmp_lt_u32 s2, 128\n s_cbranch_scc1 L_A_w0')
    a('s_cmp_lt_u32 s2, 192\n s_cbranch_scc1 L_B_w0')
    a('s_branch L_H_w0')
    a.fence()
    a.label('L_notw0')
    a('s_cmp_lt_u32 s2, 128\n s_cbranch_scc1 L_A_wn')
    a('s_cmp_lt_u32 s2, 192\n s_cbranch_scc1 L_B_wn')
    a('s_branch L_H_wn')
    a.fence()

    Q, ACC, T, S, P = 16, 32, 192, 224, 232
    KB = [64, 128]; VB = [96, 160]
    vKO, vVO, vM, vL = 3, 4, 5, 6
    LA_Q, LA_MC, LA_L, LA_O = 256, 4608, 4736, 8192
    def a_setup():
        srd(rC, pK, 32 << 20); srd(rD, pV, 32 << 20)
        a(f'v_lshrrev_b32 v7, 2, v{vI}\n v_lshlrev_b32 v7, 3, v7\n v_and_b32 v8, 3, v{vI}\n v_add_u32 v7, v7, v8\n v_lshlrev_b32 v7, 8, v7\n v_lshl_add_u32 v{vKO}, v{vG}, 4, v7')
        a(f'v_lshlrev_b32 v7, 11, v{vG}\n v_lshl_add_u32 v{vVO}, v{vI}, 4, v7')
        a(f's_lshl_b32 s{sU0}, s2, 18\n s_lshl_b32 s{sT0}, s{sWAVE}, 13\n s_add_u32 s{sU0}, s{sU0}, s{sT0}')
        a(f's_add_u32 s{sU1}, s{sU0}, 65536\n s_add_u32 s{sU2}, s{sU0}, 131072\n s_add_u32 s{sU3}, s{sU0}, 196608')
    def a_loadK(n):
        for t in range(2):
            for s in range(4):
                a(f'buffer_load_dwordx4 {vr(KB[n&1]+16*t+4*s,4)}, v{vKO}, {sr(rC,4)}, s{sU0+n} offen offset:{t*1024+s*64} nt')
    def a_loadV(n):
        for j in range(8):
            a(f'buffer_load_dwordx4 {vr(VB[n&1]+4*j,4)}, v{vVO}, {sr(rD,4)}, s{sU0+n} offen offset:{j*256} nt')
    a.label('L_A_w0')
    a(f's_lshr_b32 s{sT0}, s2, 3\n s_and_b32 s{sT0}, s{sT0}, 7')
    a(f's_lshl_b32 s{sT1}, s{sT0}, 6\n s_add_u32 s{sT1}, s{sT1}, {WS_F1}')
    a(f'v_lshlrev_b32 v7, 2, v{vI}')
    poll_flags(7, f's{sT1}', 8)
    st(2)
    a(f'v_and_b32 v7, 3, v{vI}\n v_lshlrev_b32 v7, 12, v7\n v_lshrrev_b32 v8, 2, v{vI}\n v_lshl_add_u32 v7, v8, 10, v7\n v_lshl_add_u32 v7, v{vG}, 5, v7')
    a(f's_lshl_b32 s{sT1}, s{sT0}, 14\n s_lshr_b32 s{sT2}, s2, 6\n s_lshl_b32 s{sT2}, s{sT2}, 9\n s_add_u32 s{sT1}, s{sT1}, s{sT2}\n s_add_u32 s{sT1}, s{sT1}, {WS_QP}')
    for s in range(4):
        for hf in range(2):
            a(f'buffer_load_dwordx4 {vr(T+8*s+4*hf,4)}, v7, {sr(rWS,4)}, s{sT1} offen offset:{s*128+hf*16} sc1')
    a_setup()
    a('s_waitcnt vmcnt(0)')
    dpp_reduce(range(T, T + 32), (4, 8))
    for k in range(16):
        a(f'v_cvt_pk_bf16_f32 v{Q+k}, v{T+2*k}, v{T+2*k+1}')
    a(f'v_lshlrev_b32 v7, 4, v0')
    for s in range(4):
        a(f'ds_write_b128 v7, {vr(Q+4*s,4)} offset:{LA_Q+1024*s}')
    a(f'v_mov_b32 v8, {L_FLAG}\n v_mov_b32 v9, 1\n s_waitcnt lgkmcnt(0)\n ds_write_b32 v8, v9')
    st(3)
    a_loadK(0); a_loadV(0); a_loadK(1); a_loadV(1)
    a('s_branch L_A_main')
    a.fence()
    a.label('L_A_wn')
    a_setup()
    a('s_barrier')
    a_loadK(0); a_loadV(0); a_loadK(1); a_loadV(1)
    st(2)
    a(f'v_mov_b32 v8, {L_FLAG}')
    lds_flag_wait(8, 9)
    a(f'v_lshlrev_b32 v7, 4, v0')
    for s in range(4):
        a(f'ds_read_b128 {vr(Q+4*s,4)}, v7 offset:{LA_Q+1024*s}')
    a('s_waitcnt lgkmcnt(0)')
    st(3)
    a.label('L_A_main')
    a('s_nop 1')
    for n in range(4):
        K = KB[n & 1]; V = VB[n & 1]
        a(f'; ---- A tile {n}')
        a(f's_waitcnt vmcnt({[24,24,24,8][n]})')
        for s in range(4):
            for t in range(2):
                c = '0' if s == 0 else vr(S+4*t, 4)
                a(f'v_mfma_f32_16x16x32_bf16 {vr(S+4*t,4)}, {vr(K+16*t+4*s,4)}, {vr(Q+4*s,4)}, {c}')
        if n < 2: a_loadK(n + 2)
        a(f'v_max3_f32 v7, v{S}, v{S+1}, v{S+2}\n v_max3_f32 v8, v{S+3}, v{S+4}, v{S+5}\n v_max3_f32 v7, v7, v{S+6}, v{S+7}')
        if n == 0:
            a(f'v_max_f32 v7, v7, v8')
        else:
            a(f'v_max3_f32 v7, v7, v8, v{vM}')
        xg_reduce(7, 8, 'v_max_f32')
        if n > 0:
            a(f'v_sub_f32 v9, v{vM}, v7\n v_mul_f32 v9, s{sSC}, v9\n v_exp_f32 v10, v9')
        a(f'v_mov_b32 v{vM}, v7\n v_mul_f32 v8, s{sSC}, v7')
        for k in range(8):
            a(f'v_fma_f32 v{S+k}, v{S+k}, s{sSC}, -v8')
        for k in range(8):
            a(f'v_exp_f32 v{S+k}, v{S+k}')
        if n > 0:
            a(f'v_mov_b32 v11, v10')
            for k in range(16):
                a(f'v_pk_mul_f32 {vr(ACC+2*k,2)}, {vr(ACC+2*k,2)}, v[10:11]')
        for k in range(4):
            a(f'v_cvt_pk_bf16_f32 v{P+k}, v{S+2*k}, v{S+2*k+1}')
        a(f'v_add_f32 v12, v{S}, v{S+1}\n v_add_f32 v13, v{S+2}, v{S+3}\n v_add_f32 v14, v{S+4}, v{S+5}\n v_add_f32 v15, v{S+6}, v{S+7}')
        a(f'v_add_f32 v12, v12, v13\n v_add_f32 v14, v14, v15')
        if n == 0:
            a(f'v_add_f32 v{vL}, v12, v14')
        else:
            a(f'v_add_f32 v12, v12, v14\n v_fma_f32 v{vL}, v{vL}, v10, v12')
        a(f's_waitcnt vmcnt({[24,24,16,0][n]})')
        transpose8(V, T)
        if n < 2: a_loadV(n + 2)
        for e in range(8):
            c = '0' if n == 0 else vr(ACC+4*e, 4)
            a(f'v_mfma_f32_16x16x32_bf16 {vr(ACC+4*e,4)}, {vr(T+4*e,4)}, {vr(P,4)}, {c}')
        st(4 + n)
    xg_reduce(vL, 8, 'v_add_f32')
    a(f'v_mul_f32 v{vM}, s{sSC}, v{vM}')
    a(f'v_lshlrev_b32 v7, 9, v{vI}\n v_lshl_add_u32 v7, v{vG}, 7, v7\n s_lshl_b32 s{sT0}, s{sWAVE}, 11\n v_add_u32 v7, s{sT0}, v7')
    a(f'v_lshlrev_b32 v8, 5, v{vI}\n s_lshl_b32 s{sT0}, s{sWAVE}, 2\n v_add_u32 v8, s{sT0}, v8')
    a(f's_mov_b32 exec_lo, 0x000f000f\n s_mov_b32 exec_hi, 0x000f000f')
    for e in range(8):
        a(f'ds_write_b128 v7, {vr(ACC+4*e,4)} offset:{LA_O+16*e}')
    a(f'ds_write_b32 v8, v{vM} offset:{LA_MC}\n ds_write_b32 v8, v{vL} offset:{LA_L}')
    a('s_mov_b64 exec, -1')
    a(f'v_lshrrev_b32 v7, 5, v0\n v_lshlrev_b32 v7, 7, v7\n v_and_b32 v8, 7, v0\n v_lshl_add_u32 v7, v8, 4, v7\n v_bfe_u32 v8, v0, 3, 2\n v_lshl_add_u32 v7, v8, 2, v7')
    a(f's_lshl_b32 s{sT0}, s{sWAVE}, 8\n v_add_u32 v7, s{sT0}, v7')
    a(f's_lshr_b32 s{sT0}, s{sWAVE}, 1\n s_lshl_b32 s{sT1}, s{sT0}, 5\n v_mov_b32 v8, s{sT1}')
    a(f's_lshr_b32 s{sT0}, s2, 3\n s_and_b32 s{sT0}, s{sT0}, 7\n s_lshl_b32 s{sT0}, s{sT0}, 3\n s_add_u32 s{sT0}, s{sT0}, s{sWAVE}\n s_lshl_b32 s{sT0}, s{sT0}, 13\n s_add_u32 s{sT0}, s{sT0}, {WS_AP}')
    a(f's_and_b32 s{sT1}, s2, 7\n s_lshl_b32 s{sT1}, s{sT1}, 1\n s_lshr_b32 s{sT2}, s2, 6\n s_add_u32 s{sT1}, s{sT1}, s{sT2}')
    a(f's_lshl_b32 s{sT2}, s{sT1}, 8\n s_add_u32 s{sU4}, s{sT0}, s{sT2}')
    a(f's_lshl_b32 s{sT2}, s{sT1}, 2\n s_add_u32 s{sU5}, s{sT0}, s{sT2}\n s_add_u32 s{sU5}, s{sU5}, 4096')
    a(f'v_lshlrev_b32 v9, 2, v0')
    a('s_waitcnt lgkmcnt(0)\n s_barrier')
    st(8)
    MCr, Lr, Or = 16, 24, 32
    a(f'ds_read_b128 {vr(MCr,4)}, v8 offset:{LA_MC}\n ds_read_b128 {vr(MCr+4,4)}, v8 offset:{LA_MC+16}')
    a(f'ds_read_b128 {vr(Lr,4)}, v8 offset:{LA_L}\n ds_read_b128 {vr(Lr+4,4)}, v8 offset:{LA_L+16}')
    for w in range(8):
        a(f'ds_read_b32 v{Or+w}, v7 offset:{LA_O+2048*w}')
    a('s_waitcnt lgkmcnt(10)')
    a(f'v_max3_f32 v10, v{MCr}, v{MCr+1}, v{MCr+2}\n v_max3_f32 v11, v{MCr+3}, v{MCr+4}, v{MCr+5}\n v_max3_f32 v10, v10, v{MCr+6}, v{MCr+7}\n v_max_f32 v10, v10, v11')
    for w in range(8): a(f'v_sub_f32 v{MCr+w}, v{MCr+w}, v10')
    for w in range(8): a(f'v_exp_f32 v{MCr+w}, v{MCr+w}')
    a('s_waitcnt lgkmcnt(0)')
    a(f'v_mul_f32 v11, v{MCr}, v{Lr}\n v_mul_f32 v12, v{MCr}, v{Or}')
    for w in range(1, 8):
        a(f'v_fmac_f32 v11, v{MCr+w}, v{Lr+w}\n v_fmac_f32 v12, v{MCr+w}, v{Or+w}')
    a('v_rcp_f32 v13, v11\n v_log_f32 v14, v11\n v_mul_f32 v12, v12, v13\n v_add_f32 v14, v14, v10')
    a(f'buffer_store_dword v12, v9, {sr(rWS,4)}, s{sU4} offen sc1')
    a(f's_mov_b64 exec, 1\n buffer_store_dword v14, v9, {sr(rWS,4)}, s{sU5} offen sc1\n s_mov_b64 exec, -1')
    finish()

    TL, S, QF, ACC, PF, TR = 64, 16, 192, 32, 192, 224
    QL = 240
    vTO = 3
    def b_setup():
        srd(rC, pCKV, 16 << 20)
        a(f'v_lshrrev_b32 v7, 2, v{vI}\n v_lshlrev_b32 v7, 3, v7\n v_and_b32 v8, 3, v{vI}\n v_add_u32 v7, v7, v8\n v_lshlrev_b32 v4, 10, v7\n v_lshl_add_u32 v{vTO}, v{vG}, 4, v4')
        a(f's_lshl_b32 s{sU0}, s{sIDX}, 18\n s_lshl_b32 s{sT0}, s{sWAVE}, 15\n s_add_u32 s{sU0}, s{sU0}, s{sT0}\n s_add_u32 s{sU1}, s{sU0}, 4096')
    def b_loadtile():
        for t in range(2):
            for s in range(16):
                a(f'buffer_load_dwordx4 {vr(TL+64*t+4*s,4)}, v{vTO}, {sr(rC,4)}, s{sU0+t} offen offset:{s*64} nt')
    a.label('L_B_w0')
    a(f'v_lshlrev_b32 v7, 2, v0')
    a(f's_mov_b32 s{sT1}, {WS_F2}')
    poll_flags(7, f's{sT1}', 8)
    a(f'v_mov_b32 v8, {L_FLAG}\n v_mov_b32 v9, 1\n ds_write_b32 v8, v9')
    st(2)
    b_setup()
    b_loadtile()
    a('s_branch L_B_main')
    a.fence()
    a.label('L_B_wn')
    b_setup()
    a('s_barrier')
    b_loadtile()
    st(2)
    a(f'v_mov_b32 v8, {L_FLAG}')
    lds_flag_wait(8, 9)
    a.label('L_B_main')
    st(3)
    a(f'v_lshlrev_b32 v5, 4, v0')
    a(f's_lshr_b32 s{sT0}, s{sIDX}, 5\n s_lshl_b32 s{sT0}, s{sT0}, 15\n s_add_u32 s{sT0}, s{sT0}, {WS_QABS}')
    a(f's_lshl_b32 s{sT1}, s{sWAVE}, 12\n s_add_u32 s{sT1}, s{sT1}, s{sT0}\n s_add_u32 s{sT0}, s{sT0}, {28*1024}')
    for k in range(4):
        a(f'buffer_load_dwordx4 {vr(QF+4*k,4)}, v5, {sr(rWS,4)}, s{sT1} offen offset:{k*1024} sc1')
    for k in range(2):
        a(f'buffer_load_dwordx4 {vr(QL+4*k,4)}, v5, {sr(rWS,4)}, s{sT0} offen offset:{2048+k*1024} sc1')
    a(f'v_and_b32 v6, 3, v{vI}\n v_lshlrev_b32 v6, 1, v6\n v_bfe_u32 v7, v{vI}, 2, 1\n v_mul_u32_u24 v7, 9, v7\n v_or_b32 v6, v6, v7')
    a(f'v_xor_b32 v6, v6, v{vG}')
    a(f's_and_b32 s{sT0}, s{sWAVE}, 3\n s_lshl_b32 s{sT0}, s{sT0}, 15\n v_add_u32 v4, s{sT0}, v4')
    for q in range(4):
        a(f'v_xor_b32 v7, {4*q}, v6\n v_lshl_add_u32 v{8+q}, v7, 4, v4')
    def b_ringwrite():
        for t in range(2):
            for s in range(16):
                a(f'ds_write_b128 v{8+(s&3)}, {vr(TL+64*t+4*s,4)} offset:{t*4096+(s>>2)*256}')
    a('s_waitcnt vmcnt(6)')
    st(4)
    a(f's_cmp_ge_u32 s{sWAVE}, 4\n s_cbranch_scc1 L_B_norw0')
    b_ringwrite()
    a.label('L_B_norw0')
    a(f's_lshl_b32 s{sT0}, s{sWAVE}, 12\n s_add_u32 s{sT0}, s{sT0}, {L_QA}\n v_add_u32 v6, s{sT0}, v5')
    a('s_waitcnt vmcnt(0)')
    a(f'ds_write_b128 v6, {vr(QF,4)}\n ds_write_b128 v6, {vr(QF+4,4)} offset:1024')
    a(f's_cmp_eq_u32 s{sWAVE}, 7\n s_cbranch_scc1 L_B_noq')
    a(f'ds_write_b128 v6, {vr(QF+8,4)} offset:2048\n ds_write_b128 v6, {vr(QF+12,4)} offset:3072')
    a.label('L_B_noq')
    a(f'v_add_u32 v6, {L_QA}, v5')
    a('s_waitcnt lgkmcnt(0)\n s_barrier')
    st(5)
    DEPTH = 4
    def qread(s):
        for hs in range(2):
            a(f'ds_read_b128 {vr(QF+8*(s%DEPTH)+4*hs,4)}, v6 offset:{(2*s+hs)*1024}')
    for s in range(DEPTH - 1): qread(s)
    for s in range(16):
        nxt = s + DEPTH - 1
        if nxt < 15: qread(nxt)
        if s < 15:
            out = min(nxt, 14) - s
            a(f's_waitcnt lgkmcnt({2*out})')
        for hs in range(2):
            qf = QF + 8 * (s % DEPTH) + 4 * hs if s < 15 else QL + 4 * hs
            for t in range(2):
                d = S + 8 * hs + 4 * t
                c = '0' if s == 0 else vr(d, 4)
                a(f'v_mfma_f32_16x16x32_bf16 {vr(d,4)}, {vr(TL+64*t+4*s,4)}, {vr(qf,4)}, {c}')
    for hs in range(2):
        b = S + 8 * hs
        a(f'v_max3_f32 v{12+hs}, v{b}, v{b+1}, v{b+2}\n v_max3_f32 v14, v{b+3}, v{b+4}, v{b+5}\n v_max3_f32 v{12+hs}, v{12+hs}, v{b+6}, v{b+7}\n v_max_f32 v{12+hs}, v{12+hs}, v14')
        xg_reduce(12 + hs, 14, 'v_max_f32')
    a(f'v_cndmask_b32 v14, v12, v13, {sr(sM1,2)}')
    a(f'v_and_b32 v15, 31, v0\n v_lshlrev_b32 v15, 5, v15\n s_lshl_b32 s{sT0}, s{sWAVE}, 2\n v_add_u32 v15, s{sT0}, v15')
    a(f'v_add_u32 v7, {L_MX}, v15\n ds_write_b32 v7, v14')
    a(f'v_lshlrev_b32 v7, 5, v{vI}\n v_add_u32 v248, {L_MX}, v7\n v_add_u32 v249, {L_QA+16384}, v7\n v_add_u32 v15, {L_QA+16384}, v15')
    a('s_waitcnt lgkmcnt(0)\n s_barrier')
    st(6)
    for hs in range(2):
        a(f'ds_read_b128 {vr(QF+8*hs,4)}, v248 offset:{512*hs}\n ds_read_b128 {vr(QF+8*hs+4,4)}, v248 offset:{512*hs+16}')
    a('s_waitcnt lgkmcnt(0)')
    vMC = 250
    for hs in range(2):
        b = QF + 8 * hs
        a(f'v_max3_f32 v12, v{b}, v{b+1}, v{b+2}\n v_max3_f32 v14, v{b+3}, v{b+4}, v{b+5}\n v_max3_f32 v12, v12, v{b+6}, v{b+7}\n v_max_f32 v12, v12, v14')
        a(f'v_mul_f32 v{vMC+hs}, s{sSC}, v12')
    for hs in range(2):
        for k in range(8): a(f'v_fma_f32 v{S+8*hs+k}, v{S+8*hs+k}, s{sSC}, -v{vMC+hs}')
    for k in range(16): a(f'v_exp_f32 v{S+k}, v{S+k}')
    for hs in range(2):
        for k in range(4): a(f'v_cvt_pk_bf16_f32 v{QF+4*hs+k}, v{S+8*hs+2*k}, v{S+8*hs+2*k+1}')
    a(f's_lshl_b32 s{sT0}, s{sWAVE}, 11\n v_add_u32 v7, s{sT0}, v6')
    a(f'ds_write_b128 v7, {vr(QF,4)}\n ds_write_b128 v7, {vr(QF+4,4)} offset:1024')
    for hs in range(2):
        b = S + 8 * hs
        a(f'v_add_f32 v{b}, v{b}, v{b+1}\n v_add_f32 v{b+2}, v{b+2}, v{b+3}\n v_add_f32 v{b+4}, v{b+4}, v{b+5}\n v_add_f32 v{b+6}, v{b+6}, v{b+7}')
        a(f'v_add_f32 v{b}, v{b}, v{b+2}\n v_add_f32 v{b+4}, v{b+4}, v{b+6}\n v_add_f32 v{12+hs}, v{b}, v{b+4}')
        xg_reduce(12 + hs, 14, 'v_add_f32')
    a(f'v_cndmask_b32 v14, v12, v13, {sr(sM1,2)}')
    a(f'ds_write_b32 v15, v14')
    a(f'v_lshrrev_b32 v12, 2, v{vI}')
    a(f'v_lshl_add_u32 v13, v{vG}, 3, v12\n v_lshlrev_b32 v13, 10, v13')
    a(f'v_and_b32 v14, 1, v{vI}\n v_lshl_add_u32 v13, v14, 3, v13')
    a(f's_lshr_b32 s{sT0}, s{sWAVE}, 1\n s_lshl_b32 s{sT0}, s{sT0}, 8\n v_add_u32 v13, s{sT0}, v13')
    a(f'v_lshlrev_b32 v12, 1, v12\n v_and_b32 v14, 1, v{vG}\n v_mul_u32_u24 v14, 9, v14\n v_or_b32 v12, v12, v14')
    a(f'v_bfe_u32 v14, v{vI}, 1, 1\n v_xor_b32 v12, v12, v14')
    a(f's_and_b32 s{sT0}, s{sWAVE}, 1\n s_lshl_b32 s{sT0}, s{sT0}, 3\n v_xor_b32 v12, s{sT0}, v12')
    for ct in range(4):
        a(f'v_xor_b32 v14, {2*ct}, v12\n v_lshl_add_u32 v{16+ct}, v14, 4, v13\n v_add_u32 v{20+ct}, 0x10000, v{16+ct}')
    a('s_waitcnt lgkmcnt(0)\n s_barrier')
    st(7)
    def b_pv(R):
        for slot in range(4):
            for hs in range(2):
                a(f'ds_read_b128 {vr(PF+8*slot+4*hs,4)}, v6 offset:{((4*R+slot)*2+hs)*1024}')
        items = [(slot, ct) for slot in range(4) for ct in range(4)]
        ND = 4
        def trread(k):
            slot, ct = items[k]
            ad = (16 if slot < 2 else 20) + ct
            for s in range(2):
                a(f'ds_read_b64_tr_b16 {vr(TR+4*(k%ND)+2*s,2)}, v{ad} offset:{(slot&1)*32768+s*4096}')
        for k in range(ND - 1): trread(k)
        for k in range(16):
            nxt = k + ND - 1
            if nxt < 16: trread(nxt)
            out = min(nxt, 15) - k
            a(f's_waitcnt lgkmcnt({2*out})')
            slot, ct = items[k]
            for hs in range(2):
                d = ACC + 8 * ct + 4 * hs
                c = '0' if (R == 0 and slot == 0) else vr(d, 4)
                a(f'v_mfma_f32_16x16x32_bf16 {vr(d,4)}, {vr(TR+4*(k%ND),4)}, {vr(PF+8*slot+4*hs,4)}, {c}')
    b_pv(0)
    a('s_barrier')
    a(f's_cmp_lt_u32 s{sWAVE}, 4\n s_cbranch_scc1 L_B_norw1')
    b_ringwrite()
    a.label('L_B_norw1')
    a('s_waitcnt lgkmcnt(0)\n s_barrier')
    st(8)
    b_pv(1)
    LR = 64
    for hs in range(2):
        a(f'ds_read_b128 {vr(LR+8*hs,4)}, v249 offset:{512*hs}\n ds_read_b128 {vr(LR+8*hs+4,4)}, v249 offset:{512*hs+16}')
    a(f'v_lshlrev_b32 v7, 15, v{vI}\n v_and_b32 v8, 1, v{vG}\n v_lshl_add_u32 v7, v8, 5, v7\n v_lshrrev_b32 v8, 1, v{vG}\n v_lshl_add_u32 v7, v8, 4, v7')
    a(f's_lshr_b32 s{sT0}, s{sIDX}, 5\n s_and_b32 s{sT1}, s{sIDX}, 31')
    a(f's_lshl_b32 s{sU2}, s{sT0}, 20\n s_lshl_b32 s{sT2}, s{sT1}, 10\n s_add_u32 s{sU2}, s{sU2}, s{sT2}\n s_lshl_b32 s{sT2}, s{sWAVE}, 7\n s_add_u32 s{sU2}, s{sU2}, s{sT2}\n s_add_u32 s{sU2}, s{sU2}, {WS_BP}\n s_add_u32 s{sU3}, s{sU2}, {16*32768}')
    a(f's_lshl_b32 s{sU4}, s{sT0}, 12\n s_lshl_b32 s{sT2}, s{sT1}, 2\n s_add_u32 s{sU4}, s{sU4}, s{sT2}\n s_add_u32 s{sU4}, s{sU4}, {WS_LB}')
    a('s_waitcnt lgkmcnt(0)')
    for hs in range(2):
        b = LR + 8 * hs
        a(f'v_add_f32 v{b}, v{b}, v{b+1}\n v_add_f32 v{b+2}, v{b+2}, v{b+3}\n v_add_f32 v{b+4}, v{b+4}, v{b+5}\n v_add_f32 v{b+6}, v{b+6}, v{b+7}')
        a(f'v_add_f32 v{b}, v{b}, v{b+2}\n v_add_f32 v{b+4}, v{b+4}, v{b+6}\n v_add_f32 v{b}, v{b}, v{b+4}')
        a(f'v_rcp_f32 v{12+hs}, v{b}\n v_log_f32 v{14+hs}, v{b}')
        a(f'v_add_f32 v{14+hs}, v{14+hs}, v{vMC+hs}')
    OUTR = 80
    for hs in range(2):
        for p in range(2):
            o = OUTR + 8 * hs + 4 * p
            for cc in range(2):
                d = ACC + 8 * (2 * p + cc) + 4 * hs
                for r in range(4): a(f'v_mul_f32 v{d+r}, v{d+r}, v{12+hs}')
                a(f'v_cvt_pk_bf16_f32 v{o+2*cc}, v{d}, v{d+1}\n v_cvt_pk_bf16_f32 v{o+2*cc+1}, v{d+2}, v{d+3}')
            a(f'v_permlane16_swap_b32 v{o}, v{o+2}\n v_permlane16_swap_b32 v{o+1}, v{o+3}')
            a(f'buffer_store_dwordx4 {vr(o,4)}, v7, {sr(rWS,4)}, s{sU2+hs} offen offset:{p*64} sc1')
    a(f's_cmp_lg_u32 s{sWAVE}, 0\n s_cbranch_scc1 L_B_nolam')
    a(f'v_cndmask_b32 v14, v14, v15, {sr(sM1,2)}\n v_and_b32 v8, 31, v0\n v_lshlrev_b32 v8, 7, v8')
    a(f's_mov_b32 exec_hi, 0\n buffer_store_dword v14, v8, {sr(rWS,4)}, s{sU4} offen sc1\n s_mov_b64 exec, -1')
    a.label('L_B_nolam')
    a('s_waitcnt vmcnt(0)\n s_barrier')
    a(f's_cmp_lg_u32 s{sWAVE}, 0\n s_cbranch_scc1 L_B_done')
    a(f's_lshl_b32 s{sT0}, s{sIDX}, 2\n s_add_u32 s{sT0}, s{sT0}, {WS_F3}\n v_mov_b32 v6, s{sTAG}\n v_mov_b32 v7, 0')
    a(f's_mov_b64 exec, 1\n buffer_store_dword v6, v7, {sr(rWS,4)}, s{sT0} offen sc1\n s_mov_b64 exec, -1')
    a.label('L_B_done')
    finish()

    UK, QB, T = 64, 16, 192
    WO_RAW, WO_T, UV_RAW, UV_T = 64, 128, 192, 224
    LH_Q, LH_CTX = 256, 8192
    def h_setup():
        a(f's_lshr_b32 s{sH}, s{sIDX}, 1\n s_and_b32 s{sKQ}, s{sIDX}, 1')
        srd(rC, pWUK, 4 << 20)
        a(f'v_lshrrev_b32 v7, 2, v{vI}\n v_lshlrev_b32 v7, 3, v7\n v_and_b32 v8, 3, v{vI}\n v_add_u32 v7, v7, v8\n v_lshlrev_b32 v7, 13, v7\n v_lshl_add_u32 v3, v{vG}, 4, v7')
        a(f's_lshl_b32 s{sT0}, s{sKQ}, 3\n s_add_u32 s{sU2}, s{sT0}, s{sWAVE}')
        a(f's_lshl_b32 s{sU0}, s{sU2}, 18\n s_lshl_b32 s{sT0}, s{sH}, 8\n s_add_u32 s{sU0}, s{sU0}, s{sT0}\n s_add_u32 s{sU1}, s{sU0}, {4*8192}')
    def h_loaduk():
        for t in range(2):
            for s in range(4):
                a(f'buffer_load_dwordx4 {vr(UK+16*t+4*s,4)}, v3, {sr(rC,4)}, s{sU0+t} offen offset:{s*64} nt')
    a.label('L_H_w0')
    h_setup()
    h_loaduk()
    a(f's_lshl_b32 s{sT1}, s{sH}, 4\n s_add_u32 s{sT1}, s{sT1}, {WS_F1+512}')
    a(f'v_and_b32 v7, 3, v0\n v_lshlrev_b32 v7, 2, v7')
    poll_flags(7, f's{sT1}', 8)
    st(2)
    a(f'v_and_b32 v7, 7, v{vI}\n v_lshlrev_b32 v7, 9, v7\n v_lshl_add_u32 v7, v{vG}, 5, v7')
    a(f's_lshl_b32 s{sT1}, s{sH}, 12\n s_add_u32 s{sT1}, s{sT1}, {WS_QP + 32*4096}')
    for s in range(4):
        for hf in range(2):
            a(f'buffer_load_dwordx4 {vr(T+8*s+4*hf,4)}, v7, {sr(rWS,4)}, s{sT1} offen offset:{s*128+hf*16} sc1')
    a('s_waitcnt vmcnt(0)')
    dpp_reduce(range(T, T + 32), (2, 4))
    for k in range(16):
        a(f'v_cvt_pk_bf16_f32 v{QB+k}, v{T+2*k}, v{T+2*k+1}')
    a(f'v_lshlrev_b32 v7, 4, v0')
    for s in range(4):
        a(f'ds_write_b128 v7, {vr(QB+4*s,4)} offset:{LH_Q+1024*s}')
    a('s_waitcnt lgkmcnt(0)\n s_barrier')
    a('s_branch L_H_main')
    a.fence()
    a.label('L_H_wn')
    h_setup()
    a('s_barrier')
    h_loaduk()
    a('s_barrier')
    a(f'v_lshlrev_b32 v7, 4, v0')
    for s in range(4):
        a(f'ds_read_b128 {vr(QB+4*s,4)}, v7 offset:{LH_Q+1024*s}')
    a('s_waitcnt lgkmcnt(0)')
    a.label('L_H_main')
    st(3)
    a('s_waitcnt vmcnt(0)')
    for s in range(4):
        for t in range(2):
            c = '0' if s == 0 else vr(32+4*t, 4)
            a(f'v_mfma_f32_16x16x32_bf16 {vr(32+4*t,4)}, {vr(UK+16*t+4*s,4)}, {vr(QB+4*s,4)}, {c}')
    a(f'v_lshlrev_b32 v7, 15, v{vI}\n v_lshl_add_u32 v7, v{vG}, 8, v7')
    a(f's_lshl_b32 s{sT0}, s{sU2}, 1\n s_lshr_b32 s{sT1}, s{sH}, 4\n s_add_u32 s{sT0}, s{sT0}, s{sT1}\n s_lshl_b32 s{sT0}, s{sT0}, 10')
    a(f's_and_b32 s{sT1}, s{sH}, 15\n s_lshl_b32 s{sT1}, s{sT1}, 4\n s_add_u32 s{sT0}, s{sT0}, s{sT1}\n s_add_u32 s{sT0}, s{sT0}, {WS_QABS}')
    for k in range(4):
        a(f'v_cvt_pk_bf16_f32 v{8+k}, v{32+2*k}, v{32+2*k+1}')
    a(f's_mov_b32 exec_lo, 0x00030003\n s_mov_b32 exec_hi, 0x00030003')
    a(f'buffer_store_dwordx4 v[8:11], v7, {sr(rWS,4)}, s{sT0} offen sc1')
    a('s_mov_b64 exec, -1')
    a('s_waitcnt vmcnt(0)\n s_barrier')
    a(f's_cmp_lg_u32 s{sWAVE}, 0\n s_cbranch_scc1 L_H_nof2')
    a(f's_lshl_b32 s{sT0}, s{sIDX}, 2\n s_add_u32 s{sT0}, s{sT0}, {WS_F2}\n v_mov_b32 v6, s{sTAG}\n v_mov_b32 v7, 0')
    a(f's_mov_b64 exec, 1\n buffer_store_dword v6, v7, {sr(rWS,4)}, s{sT0} offen sc1\n s_mov_b64 exec, -1')
    a.label('L_H_nof2')
    st(4)
    srd(rD, pWUV, 4 << 20)
    a(f's_cmp_lt_u32 s{sWAVE}, 4')
    a(f's_cselect_b32 s{rE}, s{pWO}, s{pBWO}\n s_cselect_b32 s{rE+1}, s{pWO+1}, s{pBWO+1}')
    a(f's_and_b32 s{rE+1}, s{rE+1}, 0xffff\n s_mov_b32 s{rE+2}, {4<<20}\n s_mov_b32 s{rE+3}, 0x00020000')
    a(f'v_lshlrev_b32 v3, 16, v{vG}\n v_lshl_add_u32 v3, v{vI}, 3, v3')
    a(f's_lshl_b32 s{sT0}, s{sWAVE}, 19\n s_lshl_b32 s{sT1}, s{sIDX}, 7\n s_add_u32 s{sT0}, s{sT0}, s{sT1}')
    for ks in range(2):
        for j in range(8):
            if ks or j: a(f's_add_u32 s{sT0}, s{sT0}, {8192 if j else 25*8192}')
            a(f'buffer_load_dwordx2 {vr(UV_RAW+16*ks+2*j,2)}, v3, {sr(rD,4)}, s{sT0} offen nt')
    a(f'v_lshlrev_b32 v4, 13, v{vG}\n v_lshl_add_u32 v4, v{vI}, 4, v4')
    a(f's_and_b32 s{sU3}, s{sWAVE}, 3')
    a(f's_lshl_b32 s{sT0}, s{sIDX}, 16\n s_lshl_b32 s{sT1}, s{sU3}, 8\n s_add_u32 s{sT0}, s{sT0}, s{sT1}')
    for ks in range(2):
        for j in range(8):
            if j == 4: a(f's_add_u32 s{sT0}, s{sT0}, 4096')
            if ks and j == 0: a(f's_add_u32 s{sT0}, s{sT0}, {32768-4096}')
            a(f'buffer_load_dwordx4 {vr(WO_RAW+32*ks+4*j,4)}, v4, {sr(rE,4)}, s{sT0} offen offset:{(j&3)*1024} nt')
    a('s_waitcnt vmcnt(16)')
    for ks in range(2): transpose8(UV_RAW + 16 * ks, UV_T + 16 * ks, nd=2)
    a('s_waitcnt vmcnt(8)')
    transpose8(WO_RAW, WO_T)
    a('s_waitcnt vmcnt(0)')
    transpose8(WO_RAW + 32, WO_T + 32)
    st(5)
    a(f's_cmp_lg_u32 s{sWAVE}, 0\n s_cbranch_scc1 L_H_nopoll3')
    a(f'v_lshlrev_b32 v7, 2, v0\n s_mov_b32 s{sT1}, {WS_F3}')
    poll_flags(7, f's{sT1}', 8)
    a.label('L_H_nopoll3')
    a('s_barrier')
    st(6)
    D, LAM, AC = 64, 96, 32
    a(f'v_and_b32 v8, 1, v{vI}\n v_lshrrev_b32 v9, 1, v{vI}')
    a(f'v_lshlrev_b32 v7, 20, v8\n v_lshl_add_u32 v7, v9, 12, v7\n v_lshl_add_u32 v7, v{vG}, 4, v7')
    a(f'v_lshlrev_b32 v10, 12, v8\n v_lshl_add_u32 v10, v9, 4, v10')
    a(f's_lshl_b32 s{sT0}, s{sH}, 7\n s_add_u32 s{sT0}, s{sT0}, {WS_LB}')
    a(f'buffer_load_dwordx4 {vr(LAM,4)}, v10, {sr(rWS,4)}, s{sT0} offen sc1')
    a(f's_lshl_b32 s{sT0}, s{sH}, 15\n s_lshl_b32 s{sT1}, s{sWAVE}, 7\n s_add_u32 s{sT0}, s{sT0}, s{sT1}\n s_add_u32 s{sT0}, s{sT0}, {WS_BP}')
    for t in range(4):
        for ks in range(2):
            a(f'buffer_load_dwordx4 {vr(D+8*t+4*ks,4)}, v7, {sr(rWS,4)}, s{sT0} offen offset:{t*1024+ks*64} sc1')
    a('s_waitcnt vmcnt(8)')
    a(f'v_max3_f32 v11, v{LAM}, v{LAM+1}, v{LAM+2}\n v_max_f32 v11, v11, v{LAM+3}')
    dpp_reduce([11], (2, 4, 8), 'v_max_f32')
    for t in range(4): a(f'v_sub_f32 v{LAM+t}, v{LAM+t}, v11')
    for t in range(4): a(f'v_exp_f32 v{LAM+t}, v{LAM+t}')
    a(f'v_add_f32 v11, v{LAM}, v{LAM+1}\n v_add_f32 v12, v{LAM+2}, v{LAM+3}\n v_add_f32 v11, v11, v12')
    dpp_reduce([11], (2, 4, 8))
    a('v_rcp_f32 v11, v11')
    for t in range(4): a(f'v_mul_f32 v{LAM+t}, v{LAM+t}, v11')
    for t in range(4):
        a(f's_waitcnt vmcnt({6-2*t})')
        for k in range(8):
            src = D + 8 * t + k
            a(f'v_lshlrev_b32 v12, 16, v{src}\n v_and_b32 v13, 0xffff0000, v{src}')
            if t == 0:
                a(f'v_mul_f32 v{AC+2*k}, v12, v{LAM}\n v_mul_f32 v{AC+2*k+1}, v13, v{LAM}')
            else:
                a(f'v_fmac_f32 v{AC+2*k}, v12, v{LAM+t}\n v_fmac_f32 v{AC+2*k+1}, v13, v{LAM+t}')
    dpp_reduce(range(AC, AC + 16), (2, 4, 8))
    for k in range(8): a(f'v_cvt_pk_bf16_f32 v{16+k}, v{AC+2*k}, v{AC+2*k+1}')
    for ks in range(2):
        for e in range(4):
            c = '0' if ks == 0 else vr(48+4*e, 4)
            a(f'v_mfma_f32_16x16x32_bf16 {vr(48+4*e,4)}, {vr(16+4*ks,4)}, {vr(UV_T+16*ks+4*e,4)}, {c}')
    a(f'v_lshlrev_b32 v7, 4, v0\n s_lshl_b32 s{sT0}, s{sWAVE}, 9\n v_add_u32 v7, s{sT0}, v7')
    for e in range(4): a(f'v_cndmask_b32 v{8+e}, v{48+4*e}, v{48+4*e+1}, {sr(sM1,2)}')
    a(f's_mov_b32 exec_hi, 0\n ds_write_b128 v7, v[8:11] offset:{LH_CTX}\n s_mov_b64 exec, -1')
    a('s_waitcnt lgkmcnt(0)\n s_barrier')
    st(7)
    a(f'v_lshlrev_b32 v7, 8, v{vI}\n v_lshl_add_u32 v7, v{vG}, 5, v7')
    a(f's_cmp_lt_u32 s{sWAVE}, 4\n s_cbranch_scc1 L_H_T1')
    for ks in range(2):
        for hf in range(2):
            a(f'ds_read_b128 {vr(AC+8*ks+4*hf,4)}, v7 offset:{LH_CTX+ks*128+hf*16}')
    a(f's_mov_b32 s{sU4}, {WS_YB}\n s_mov_b32 s{sU5}, 1024')
    a('s_waitcnt lgkmcnt(0)')
    a('s_branch L_H_proj')
    a.fence()
    a.label('L_H_T1')
    a(f's_lshl_b32 s{sT0}, s{sIDX}, 13\n s_add_u32 s{sT0}, s{sT0}, {WS_AP}\n s_add_u32 s{sT1}, s{sT0}, 4096')
    a(f'v_lshlrev_b32 v8, 2, v{vI}')
    a(f's_mov_b32 s{sSPIN}, {SPIN_MAX}')
    a.label('L_H_p4a')
    a(f'buffer_load_dword v9, v8, {sr(rWS,4)}, s{sT1} offen sc1\n s_waitcnt vmcnt(0)')
    a(f'v_cmp_ne_u32 vcc, -1, v9\n s_cbranch_vccnz L_H_p4b')
    a(f's_sleep 4\n s_sub_u32 s{sSPIN}, s{sSPIN}, 1\n s_cmp_lg_u32 s{sSPIN}, 0\n s_cbranch_scc1 L_H_p4a')
    a.label('L_H_p4b')
    a(f'buffer_load_dword v9, v8, {sr(rWS,4)}, s{sT1} offen sc1')
    for ks in range(2):
        for hf in range(2):
            a(f'buffer_load_dwordx4 {vr(AC+8*ks+4*hf,4)}, v7, {sr(rWS,4)}, s{sT0} offen offset:{ks*128+hf*16} sc1')
    a('s_waitcnt vmcnt(0)')
    a(f'v_max3_u32 v10, v9, v{AC}, v{AC+1}')
    for k in range(1, 8): a(f'v_max3_u32 v10, v10, v{AC+2*k}, v{AC+2*k+1}')
    a(f'v_cmp_eq_u32 vcc, -1, v10\n s_cbranch_vccz L_H_p4d')
    a(f's_sub_u32 s{sSPIN}, s{sSPIN}, 1\n s_cmp_gt_i32 s{sSPIN}, 0\n s_cbranch_scc1 L_H_p4b')
    a.label('L_H_p4d')
    st(8)
    a('v_mov_b32 v11, v9')
    dpp_reduce([11], (2, 4, 8), 'v_max_f32')
    a('v_sub_f32 v9, v9, v11\n v_exp_f32 v9, v9\n v_mov_b32 v11, v9')
    dpp_reduce([11], (2, 4, 8))
    a('v_rcp_f32 v11, v11\n v_mul_f32 v10, v9, v11\n v_mul_f32 v11, v9, v11')
    for k in range(8): a(f'v_pk_mul_f32 {vr(AC+2*k,2)}, {vr(AC+2*k,2)}, v[10:11]')
    a(f's_mov_b32 s{sU4}, {WS_YA}\n s_mov_b32 s{sU5}, 0')
    a.label('L_H_proj')
    a('s_nop 1')
    dpp_reduce(range(AC, AC + 16), (2, 4, 8))
    for k in range(8): a(f'v_cvt_pk_bf16_f32 v{16+k}, v{AC+2*k}, v{AC+2*k+1}')
    Y = 64
    for ks in range(2):
        for e in range(8):
            c = '0' if ks == 0 else vr(Y+4*e, 4)
            a(f'v_mfma_f32_16x16x32_bf16 {vr(Y+4*e,4)}, {vr(16+4*ks,4)}, {vr(WO_T+32*ks+4*e,4)}, {c}')
    a(f'v_and_b32 v7, 1, v{vG}\n v_lshlrev_b32 v7, 17, v7\n v_lshrrev_b32 v8, 1, v{vI}\n v_lshl_add_u32 v7, v8, 12, v7\n v_and_b32 v8, 1, v{vI}\n v_lshl_add_u32 v7, v8, 5, v7\n v_lshrrev_b32 v8, 1, v{vG}\n v_lshl_add_u32 v7, v8, 4, v7')
    a(f's_lshl_b32 s{sT0}, s{sU3}, 15\n s_lshl_b32 s{sT1}, s{sIDX}, 6\n s_add_u32 s{sT0}, s{sT0}, s{sT1}\n s_add_u32 s{sT0}, s{sT0}, s{sU4}')
    select4(Y, 12, 8, 9)
    a(f'buffer_store_dwordx4 v[12:15], v7, {sr(rWS,4)}, s{sT0} offen sc1')
    st(9)
    a(f's_cmp_lg_u32 s{sU3}, 0\n s_cbranch_scc1 L_H_done')
    srd(rC, pOUT, 4096)
    a(f's_lshl_b32 s{sT0}, s{sIDX}, 12\n s_add_u32 s{sT0}, s{sT0}, s{sU4}')
    a(f'v_lshlrev_b32 v7, 4, v0')
    a(f's_lshr_b32 s{sT1}, s{sIDX}, 5\n s_lshl_b32 s{sT1}, s{sT1}, 11\n s_and_b32 s{sT2}, s{sIDX}, 31\n s_lshl_b32 s{sT2}, s{sT2}, 5\n s_add_u32 s{sT1}, s{sT1}, s{sT2}\n s_add_u32 s{sT1}, s{sT1}, s{sU5}')
    a(f'v_lshlrev_b32 v8, 3, v0')
    a(f's_mov_b32 s{sSPIN}, {SPIN_MAX}')
    a.label('L_H_p6')
    for t in range(4):
        a(f'buffer_load_dwordx4 {vr(AC+4*t,4)}, v7, {sr(rWS,4)}, s{sT0} offen offset:{t*1024} sc1')
    a('s_waitcnt vmcnt(0)')
    a(f'v_max_u32 v10, v{AC}, v{AC+1}')
    for k in range(1, 8): a(f'v_max3_u32 v10, v10, v{AC+2*k}, v{AC+2*k+1}')
    a(f'v_cmp_eq_u32 vcc, -1, v10\n s_cbranch_vccz L_H_p6d')
    a(f's_sub_u32 s{sSPIN}, s{sSPIN}, 1\n s_cmp_gt_i32 s{sSPIN}, 0\n s_cbranch_scc1 L_H_p6')
    a.label('L_H_p6d')
    st(10)
    for k in range(4):
        a(f'v_add_f32 v{AC+k}, v{AC+k}, v{AC+4+k}\n v_add_f32 v{AC+8+k}, v{AC+8+k}, v{AC+12+k}')
    for k in range(4): a(f'v_add_f32 v{AC+k}, v{AC+k}, v{AC+8+k}')
    dpp_reduce(range(AC, AC + 4), (4, 8))
    for k in range(4): a(f'v_mov_b32 v{AC+4+k}, v{AC+k}')
    for k in range(4): a(f'v_permlane16_swap_b32 v{AC+k}, v{AC+4+k}')
    for k in range(4): a(f'v_add_f32 v{AC+k}, v{AC+k}, v{AC+4+k}')
    for k in range(4): a(f'v_mov_b32 v{AC+4+k}, v{AC+k}')
    for k in range(4): a(f'v_permlane32_swap_b32 v{AC+k}, v{AC+4+k}')
    for k in range(4): a(f'v_add_f32 v{AC+k}, v{AC+k}, v{AC+4+k}')
    a(f'v_cvt_pk_bf16_f32 v10, v{AC}, v{AC+1}\n v_cvt_pk_bf16_f32 v11, v{AC+2}, v{AC+3}')
    a(f's_mov_b64 exec, 15\n buffer_store_dwordx2 v[10:11], v8, {sr(rC,4)}, s{sT1} offen\n s_mov_b64 exec, -1')
    a(f's_add_u32 s{sT0}, s{sIDX}, s{sWAVE}\n s_cmp_lg_u32 s{sT0}, 0\n s_cbranch_scc1 L_H_done')
    a(f'v_mov_b32 v6, s{sTAG}\n v_mov_b32 v7, {WS_EPOCH}')
    a(f's_mov_b64 exec, 1\n buffer_store_dword v6, v7, {sr(rWS,4)}, 0 offen\n s_mov_b64 exec, -1')
    a.label('L_H_done')
    finish()
    if stamp:
        a.label('L_stampout')
        a(f's_lshl_b32 s{sT0}, s2, 3\n s_add_u32 s{sT0}, s{sT0}, s{sWAVE}\n s_lshl_b32 s{sT0}, s{sT0}, 6\n s_add_u32 s{sT0}, s{sT0}, {WS_STAMP}')
        a('v_mov_b32 v7, 0\n s_mov_b64 exec, 1')
        for k in range(NSTAMP // 4):
            for i in range(4): a(f'v_mov_b32 v{8+i}, s{sSTAMPS+4*k+i}')
            a(f'buffer_store_dwordx4 v[8:11], v7, {sr(rWS,4)}, s{sT0} offen offset:{16*k}')
            a('s_nop 1')
    a.label('L_end')
    a('s_endpgm')
    a.raw('.section .rodata,"a"\n.p2align 6')
    a.raw(f'.amdhsa_kernel {KN}')
    a.raw('  .amdhsa_next_free_vgpr 256\n  .amdhsa_next_free_sgpr 102\n  .amdhsa_accum_offset 256\n  .amdhsa_group_segment_fixed_size 0\n  .amdhsa_kernarg_size 112\n  .amdhsa_user_sgpr_count 2\n  .amdhsa_user_sgpr_kernarg_segment_ptr 1\n  .amdhsa_system_sgpr_workgroup_id_x 1')
    a.raw('.end_amdhsa_kernel')
    return a.text()

if __name__ == '__main__':
    open('k1.s', 'w').write(gen(False))
    open('k1_st.s', 'w').write(gen(True))
```
